```python
import torch

def _softmax(x, axis=-1):
    return torch.softmax(x, dim=axis)
def _gelu(x):
    return torch.nn.functional.gelu(x, approximate="tanh")
def _silu(x):
    return torch.nn.functional.silu(x)
def _sigmoid(x):
    return torch.sigmoid(x)
def _layernorm(x, axis=-1, eps=1e-5):
    m = x.mean(dim=axis, keepdim=True)
    v = x.var(dim=axis, keepdim=True, unbiased=False)
    return (x - m) / torch.sqrt(v + eps)
def _scatter_add(tgt, idx, src, axis=0):
    return tgt.clone().index_add_(axis, idx, src)
def _segment_sum(src, seg, n):
    out = torch.zeros((n,) + src.shape[1:], dtype=src.dtype)
    return out.index_add_(0, seg, src)
def _pad(x, pw):
    flat = tuple(v for pair in reversed(pw) for v in pair)
    return torch.nn.functional.pad(x, flat)

kernel_name = 'standalone__self_sup_conv_stem_hubert__speech'

def setup_inputs():

    _w = (lambda a: (lambda t: t.to(torch.bfloat16) if t.is_floating_point() else t)(torch.as_tensor(a)))
    B, T, D, K = 2, 4000, 512, 3
    scale = (1.0 / (K * D)) ** 0.5
    return {
        "x": _w((lambda *s: torch.randn(*s, dtype=torch.bfloat16) * 0.05)(B, T, D)),
        "w": _w((lambda *s: torch.randn(*s, dtype=torch.bfloat16) * 0.05)(K, D, D) * scale),
        "b": _w((lambda *s: torch.randn(*s, dtype=torch.bfloat16) * 0.05)(D) * 0.1),
        "gamma": _w(torch.ones((D,), dtype=float)),
        "beta": _w(torch.zeros((D,), dtype=float)),
    }

def reference(x, w, b, gamma, beta):
    B, T, D = x.shape
    K = w.shape[0]
    s = 2
    L = (T - K) // s + 1
    y = torch.einsum('blc,cd->bld', x[:, 0 : s * L : s, :], w[0])
    for i in range(1, K):
        y = y + torch.einsum('blc,cd->bld', x[:, i : i + s * L : s, :], w[i])
    y = y + b[None, None, :]
    mu = y.mean(1, keepdims=True)
    var = ((y - mu) ** 2).mean(1, keepdims=True)
    yn = (y - mu) / torch.sqrt(var + 1e-5)
    yn = yn * gamma[None, None, :] + beta[None, None, :]
    return _gelu(yn)
```

```python
import sys

NAME = "standalone__self_sup_conv_stem_hubert__speech"
K1 = "conv_gemm_kernel"
K2 = "norm_gelu_kernel"

NST = 24
RING = 6
STAGE = 24576
LDS1 = RING * STAGE
YWS_ROWS = 2048
STATS_OFF = 2 * YWS_ROWS * 1024

out = []
def e(s=""):
    out.append(s)

def header():
    e("; Kernarg layout for this problem (64 bytes, ptrs only, base s[0:1]):")
    e(f"; @launch kernel={K1} grid=(256,1,1) block=(256,1,1) lds={LDS1}")
    e(f"; @launch kernel={K2} grid=(256,1,1) block=(256,1,1) lds=1024")
    e('.amdgcn_target "amdgcn-amd-amdhsa--gfx950"')
    e(".text")

def kd(name, vgpr, sgpr):
    e(".p2align 6")
    e(f".amdhsa_kernel {name}")
    e(f"  .amdhsa_next_free_vgpr {vgpr}")
    e(f"  .amdhsa_next_free_sgpr {sgpr}")
    e(f"  .amdhsa_accum_offset {(vgpr+3)//4*4}")
    e("  .amdhsa_group_segment_fixed_size 0")
    e("  .amdhsa_kernarg_size 64")
    e("  .amdhsa_user_sgpr_count 2")
    e("  .amdhsa_user_sgpr_kernarg_segment_ptr 1")
    e("  .amdhsa_system_sgpr_workgroup_id_x 1")
    e(".end_amdhsa_kernel")

def srd(base, lo, hi, nbytes):
    e(f"    s_mov_b32 s{base}, s{lo}")
    e(f"    s_and_b32 s{base+1}, s{hi}, 0xffff")
    e(f"    s_mov_b32 s{base+2}, {nbytes}")
    e(f"    s_mov_b32 s{base+3}, 0x00020000")

def gen_k1():
    e(f".globl {K1}")
    e(".p2align 8")
    e(f".type {K1},@function")
    e(f"{K1}:")
    e("    s_cmp_ge_u32 s2, 256")
    e("    s_cbranch_scc1 L_k1_end")
    e("    s_load_dwordx4 s[24:27], s[0:1], 0      ; x, w")
    e("    s_load_dwordx2 s[28:29], s[0:1], 16     ; bias")
    e("    s_load_dwordx2 s[30:31], s[0:1], 56     ; ws")
    e("    s_and_b32 s20, s2, 31                   ; mt")
    e("    s_lshr_b32 s21, s2, 5                   ; nt")
    e("    s_lshr_b32 s22, s20, 4                  ; bb")
    e("    s_and_b32 s23, s20, 15                  ; tt")
    e("    v_and_b32 v1, 63, v0                    ; lane")
    e("    v_lshrrev_b32 v2, 6, v0                 ; wave")
    e("    s_nop 0")
    e("    v_readfirstlane_b32 s32, v2")
    e("    v_lshrrev_b32 v3, 3, v1                 ; lane>>3")
    e("    v_lshlrev_b32 v8, 5, v2                 ; 32w")
    e("    v_add_u32 v3, v3, v8                    ; 32w + lane>>3")
    e("    v_and_b32 v9, 7, v1                     ; p")
    e("    v_lshrrev_b32 v10, 4, v1                ; lane>>4")
    for i in range(4):
        e(f"    v_add_u32 v11, {4*i}, v10")
        e(f"    v_and_b32 v11, 7, v11")
        e(f"    v_xor_b32 v11, v11, v9                  ; chunk")
        e(f"    v_lshlrev_b32 v11, 4, v11")
        e(f"    v_add_u32 v12, {8*i}, v3")
        e(f"    v_lshl_add_u32 v{4+i}, v12, 11, v11")
    e("    v_lshrrev_b32 v3, 3, v1")
    e("    v_lshlrev_b32 v8, 4, v2                 ; 16w")
    e("    v_add_u32 v3, v3, v8                    ; krow (i=0)")
    e("    v_lshrrev_b32 v11, 1, v3")
    e("    v_and_b32 v11, 1, v11")
    e("    v_lshlrev_b32 v11, 2, v11")
    e("    v_xor_b32 v11, v11, v9")
    e("    v_lshlrev_b32 v11, 4, v11")
    e("    s_lshl_b32 s33, s21, 7                  ; nt*128")
    e("    v_add_u32 v11, s33, v11")
    e("    v_lshl_add_u32 v14, v3, 10, v11")
    e("    v_add_u32 v15, 0x2000, v14              ; +8 rows")
    e("    v_and_b32 v8, 31, v1                    ; r")
    e("    v_lshrrev_b32 v9, 5, v1                 ; h")
    e("    v_lshrrev_b32 v10, 1, v8")
    e("    v_and_b32 v10, 7, v10                   ; (r>>1)&7")
    e("    v_lshlrev_b32 v11, 5, v2")
    e("    v_add_u32 v11, v11, v8                  ; row")
    e("    v_lshlrev_b32 v11, 7, v11               ; row*128")
    for j in range(4):
        e(f"    v_add_u32 v12, {2*j}, v9")
        e(f"    v_xor_b32 v12, v12, v10")
        e(f"    v_lshl_add_u32 v{16+j}, v12, 4, v11")
    e("    v_lshrrev_b32 v8, 4, v1                 ; g")
    e("    v_lshrrev_b32 v9, 1, v8                 ; h")
    e("    v_and_b32 v8, 1, v8                     ; nb")
    e("    v_lshrrev_b32 v10, 2, v1")
    e("    v_and_b32 v10, 3, v10                   ; rr")
    e("    v_and_b32 v12, 3, v1                    ; cc")
    e("    v_lshl_add_u32 v9, v9, 3, v10           ; 8h+rr")
    e("    v_lshlrev_b32 v9, 7, v9                 ; *128")
    e("    v_add_u32 v9, 0x4000, v9                ; + B region")
    e("    v_and_b32 v13, 1, v12")
    e("    v_lshl_add_u32 v9, v13, 3, v9           ; + (cc&1)*8")
    e("    v_lshrrev_b32 v12, 1, v12               ; cc>>1")
    e("    v_lshl_add_u32 v12, v8, 1, v12")
    e("    v_lshrrev_b32 v13, 1, v10")
    e("    v_and_b32 v13, 1, v13")
    e("    v_lshlrev_b32 v13, 2, v13               ; 4*((rr>>1)&1)")
    e("    v_xor_b32 v12, v12, v13")
    e("    v_lshl_add_u32 v20, v12, 4, v9")
    e("    v_xor_b32 v12, 4, v12")
    e("    v_lshl_add_u32 v21, v12, 4, v9")
    e("    s_waitcnt lgkmcnt(0)")
    srd(4, 24, 25, 2*4000*512*2)
    srd(8, 26, 27, 3*512*512*2)
    srd(12, 30, 31, 0x10000000)
    srd(16, 28, 29, 1024)
    e("    s_mul_i32 s34, s22, 4000")
    e("    s_lshl_b32 s35, s23, 8")
    e("    s_add_u32 s34, s34, s35")
    e("    s_lshl_b32 s34, s34, 10")
    e("    s_mov_b32 s35, 0")
    e("    s_lshl_b32 s36, s32, 12")
    e("    s_lshl_b32 s37, s32, 11")
    e("    s_add_u32 s37, s37, 0x4000")
    for r in range(32):
        e(f"    v_mov_b32 v{64+r}, 0")

    def dma(slot):
        base = slot * STAGE
        for i in range(4):
            e(f"    s_add_u32 m0, s36, {base + i*1024}")
            e(f"    s_nop 0")
            e(f"    buffer_load_dwordx4 v{4+i}, s[4:7], s34 offen lds")
        for i in range(2):
            e(f"    s_add_u32 m0, s37, {base + i*1024}")
            e(f"    s_nop 0")
            e(f"    buffer_load_dwordx4 v{14+i}, s[8:11], s35 offen lds")
        e("    s_add_u32 s34, s34, 128")
        e("    s_add_u32 s35, s35, 0x10000")

    PRE = RING - 1
    for s in range(PRE):
        dma(s)

    def fa(st): return 24 + 12*st
    def fb(st): return 28 + 12*st

    def reads(slot, j, st):
        base = slot * STAGE
        offA = base
        e(f"    ds_read_b128 v[{fa(st)}:{fa(st)+3}], vA{j}S{slot//2} offset:{offA - (slot//2)*2*STAGE}")
        for ct in range(2):
            for q in range(2):
                off = base - (slot//2)*2*STAGE + (16*j + 4*q)*128
                r0 = fb(st) + 4*ct + 2*q
                e(f"    ds_read_b64_tr_b16 v[{r0}:{r0+1}], vB{ct}S{slot//2} offset:{off}")

    amap = {0: 16, 1: 48, 2: 52}
    bmap = {0: 20, 1: 56, 2: 58}
    for g in (1, 2):
        for j in range(4):
            e(f"    v_add_u32 v{amap[g]+j}, {g*2*STAGE}, v{16+j}")
        for ct in range(2):
            e(f"    v_add_u32 v{bmap[g]+ct}, {g*2*STAGE}, v{20+ct}")

    body_start = len(out)
    outstanding_after = lambda issued, done: (issued - done) * 6
    issued = PRE
    e(f"    s_waitcnt vmcnt({(issued-1)*6})")
    e("    s_barrier")
    reads(0, 0, 0)
    step = 0
    for s in range(NST):
        slot = s % RING
        for j in range(4):
            st = step & 1
            if j == 2 and s + 1 < NST:
                e(f"    s_waitcnt vmcnt({(issued-(s+2))*6})")
                e("    s_barrier")
                if issued < NST:
                    dma(issued % RING)
                    issued += 1
            e("    s_waitcnt lgkmcnt(0)")
            if j < 3:
                reads(slot, j+1, st ^ 1)
            elif s + 1 < NST:
                reads((s+1) % RING, 0, st ^ 1)
            for ct in range(2):
                a = 64 + 16*ct
                e(f"    v_mfma_f32_32x32x16_bf16 v[{a}:{a+15}], v[{fa(st)}:{fa(st)+3}], v[{fb(st)+4*ct}:{fb(st)+4*ct+3}], v[{a}:{a+15}]")
            step += 1
    for idx in range(body_start, len(out)):
        l = out[idx]
        for g in range(3):
            for j in range(4):
                l = l.replace(f"vA{j}S{g}", f"v{amap[g]+j}")
            for ct in range(2):
                l = l.replace(f"vB{ct}S{g}", f"v{bmap[g]+ct}")
        out[idx] = l

    e("    s_waitcnt vmcnt(0) lgkmcnt(0)")
    e("    s_barrier")
    e("    v_and_b32 v8, 31, v1")
    e("    s_lshl_b32 s33, s21, 7")
    e("    v_lshl_add_u32 v9, v8, 1, s33")
    e("    buffer_load_ushort v24, v9, s[16:19], 0 offen")
    e("    buffer_load_ushort v25, v9, s[16:19], 0 offen offset:64")
    e("    s_lshl_b32 s33, s23, 7")
    e("    s_lshl_b32 s38, s32, 5")
    e("    s_add_u32 s33, s33, s38")
    e("    s_sub_u32 s33, 1999, s33")
    e("    v_lshrrev_b32 v10, 5, v1")
    e("    v_lshlrev_b32 v10, 2, v10")
    e("    v_sub_u32 v10, s33, v10")
    e("    s_nop 7")
    for ct in range(2):
        e(f"    v_mov_b32 v{26+2*ct}, 0")
        e(f"    v_mov_b32 v{27+2*ct}, 0")
    for r in range(16):
        i0 = 8*(r >> 2) + (r & 3)
        e(f"    v_cmp_lt_i32 vcc, {i0}, v10")
        e("    s_nop 1")
        for ct in range(2):
            a = 64 + 16*ct + r
            e(f"    v_cndmask_b32 v11, 0, v{a}, vcc")
            e(f"    v_add_f32 v{26+2*ct}, v{26+2*ct}, v11")
            e(f"    v_fmac_f32 v{27+2*ct}, v11, v11")
    e("    v_lshlrev_b32 v11, 3, v1")
    e("    s_lshl_b32 s38, s32, 10")
    e("    v_add_u32 v11, s38, v11")
    e("    ds_write_b64 v11, v[26:27]")
    e("    ds_write_b64 v11, v[28:29] offset:512")
    e("    s_waitcnt vmcnt(0)")
    e("    v_lshlrev_b32 v24, 16, v24")
    e("    v_lshlrev_b32 v25, 16, v25")
    e("    v_lshrrev_b32 v12, 5, v1                ; h")
    e("    v_lshlrev_b32 v12, 9, v12               ; 4h rows * 128")
    e("    v_lshl_add_u32 v12, v8, 1, v12          ; + c*2")
    e("    s_lshl_b32 s38, s32, 12")
    e("    s_add_u32 s38, s38, 8192")
    e("    v_add_u32 v12, s38, v12")
    for ct in range(2):
        for r in range(0, 16, 2):
            a = 64 + 16*ct + r
            e(f"    v_add_f32 v{a}, v{a}, v{24+ct}")
            e(f"    v_add_f32 v{a+1}, v{a+1}, v{24+ct}")
            e(f"    v_cvt_pk_bf16_f32 v{a}, v{a}, v{a+1}")
            i0 = 8*(r >> 2) + (r & 3)
            e(f"    ds_write_b16 v12, v{a} offset:{i0*128 + ct*64}")
            e(f"    ds_write_b16_d16_hi v12, v{a} offset:{(i0+1)*128 + ct*64}")
    e("    s_waitcnt lgkmcnt(0)")
    e("    s_barrier")
    e("    v_lshrrev_b32 v13, 3, v1")
    e("    v_and_b32 v14, 7, v1                    ; chunk")
    e("    v_lshlrev_b32 v15, 7, v13")
    e("    v_lshl_add_u32 v15, v14, 4, v15")
    e("    v_add_u32 v15, s38, v15")
    for i in range(4):
        e(f"    ds_read_b128 v[{32+4*i}:{35+4*i}], v15 offset:{i*1024}")
    e("    s_lshl_b32 s33, s22, 11")
    e("    s_lshl_b32 s39, s23, 7")
    e("    s_add_u32 s33, s33, s39")
    e("    s_lshl_b32 s39, s32, 5")
    e("    s_add_u32 s33, s33, s39")
    e("    s_lshl_b32 s33, s33, 10")
    e("    s_lshl_b32 s39, s21, 7")
    e("    s_add_u32 s33, s33, s39")
    e("    v_lshlrev_b32 v15, 10, v13")
    e("    v_lshl_add_u32 v15, v14, 4, v15")
    e("    v_add_u32 v15, s33, v15")
    for i in range(4):
        e(f"    s_waitcnt lgkmcnt({3-i})")
        e(f"    s_mov_b32 s39, {i*8192}")
        e(f"    buffer_store_dwordx4 v[{32+4*i}:{35+4*i}], v15, s[12:15], s39 offen")
    e("    s_cmp_lg_u32 s32, 0")
    e("    s_cbranch_scc1 L_k1_end")
    e("    v_lshrrev_b32 v11, 5, v1")
    e("    v_lshlrev_b32 v11, 9, v11")
    e("    v_lshl_add_u32 v11, v8, 3, v11")
    for w in range(4):
        for h in range(2):
            k = 2*w + h
            e(f"    ds_read_b64 v[{40+2*k}:{41+2*k}], v11 offset:{w*1024 + h*256}")
    e("    s_waitcnt lgkmcnt(0)")
    for k in range(1, 8):
        e(f"    v_add_f32 v40, v40, v{40+2*k}")
        e(f"    v_add_f32 v41, v41, v{41+2*k}")
    e("    s_lshl_b32 s33, s20, 9")
    e("    s_lshl_b32 s39, s21, 6")
    e("    s_add_u32 s33, s33, s39")
    e("    s_lshl_b32 s33, s33, 3")
    e(f"    s_add_u32 s33, s33, {STATS_OFF}")
    e("    v_lshl_add_u32 v11, v1, 3, s33")
    e("    buffer_store_dwordx2 v[40:41], v11, s[12:15], 0 offen")
    e("L_k1_end:")
    e("    s_endpgm")

def gen_k2():
    e(f".globl {K2}")
    e(".p2align 8")
    e(f".type {K2},@function")
    e(f"{K2}:")
    e("    s_cmp_ge_u32 s2, 256")
    e("    s_cbranch_scc1 L_k2_end")
    e("    s_load_dwordx4 s[24:27], s[0:1], 16")
    e("    s_load_dwordx4 s[28:31], s[0:1], 32")
    e("    s_load_dwordx2 s[32:33], s[0:1], 56     ; ws")
    e("    s_and_b32 s20, s2, 31                   ; mt")
    e("    s_lshr_b32 s21, s2, 5                   ; nt")
    e("    s_lshr_b32 s22, s20, 4                  ; bb")
    e("    s_and_b32 s23, s20, 15                  ; tt")
    e("    v_and_b32 v1, 63, v0                    ; lane")
    e("    v_lshrrev_b32 v2, 3, v0")
    e("    v_and_b32 v3, 7, v0                     ; chunk")
    e("    s_waitcnt lgkmcnt(0)")
    srd(4, 32, 33, 0x10000000)
    srd(8, 30, 31, 2*1999*512*2)
    srd(12, 24, 25, 1024)
    srd(16, 26, 27, 1024)
    srd(40, 28, 29, 1024)
    e("    s_lshl_b32 s33, s22, 11")
    e("    s_lshl_b32 s39, s23, 7")
    e("    s_add_u32 s33, s33, s39")
    e("    s_lshl_b32 s33, s33, 10")
    e("    s_lshl_b32 s39, s21, 7")
    e("    s_add_u32 s33, s33, s39")
    e("    v_lshlrev_b32 v4, 10, v2")
    e("    v_lshl_add_u32 v4, v3, 4, v4")
    e("    v_add_u32 v4, s33, v4")
    for p in range(4):
        e(f"    buffer_load_dwordx4 v[{16+4*p}:{19+4*p}], v4, s[4:7], 0 offen offset:{0}" if p == 0 else
          f"    buffer_load_dwordx4 v[{16+4*p}:{19+4*p}], v5, s[4:7], 0 offen")
        if p < 3:
            e(f"    v_add_u32 v5, {32768*(p+1)}, v4")
    e("    s_lshl_b32 s33, s22, 13                 ; bb*16*512")
    e("    s_lshl_b32 s39, s21, 6")
    e("    s_add_u32 s33, s33, s39")
    e("    s_lshl_b32 s33, s33, 3")
    e(f"    s_add_u32 s33, s33, {STATS_OFF}")
    e("    v_lshl_add_u32 v6, v1, 3, s33")
    for t in range(16):
        e(f"    buffer_load_dwordx2 v[{32+2*t}:{33+2*t}], v6, s[4:7], 0 offen offset:{t*4096}" if t*4096 < 4096 else
          f"    buffer_load_dwordx2 v[{32+2*t}:{33+2*t}], v7, s[4:7], 0 offen")
        if t < 15:
            e(f"    v_add_u32 v7, {(t+1)*4096}, v6")
    e("    s_lshl_b32 s39, s21, 7")
    e("    v_lshl_add_u32 v8, v1, 1, s39")
    e("    buffer_load_ushort v9, v8, s[12:15], 0 offen")
    e("    buffer_load_ushort v10, v8, s[16:19], 0 offen")
    e("    buffer_load_ushort v11, v8, s[40:43], 0 offen")
    e("    s_waitcnt vmcnt(3)")
    for t in range(1, 16):
        e(f"    v_add_f32 v32, v32, v{32+2*t}")
        e(f"    v_add_f32 v33, v33, v{33+2*t}")
    e("    v_mov_b32 v12, 0x3a032338               ; 1/1999")
    e("    v_mul_f32 v32, v32, v12                 ; mean(acc)")
    e("    v_mul_f32 v33, v33, v12                 ; E[acc^2]")
    e("    v_fma_f32 v33, -v32, v32, v33           ; var")
    e("    v_max_f32 v33, 0, v33")
    e("    v_add_f32 v33, 0x3727c5ac, v33          ; + 1e-5")
    e("    v_rsq_f32 v33, v33")
    e("    s_waitcnt vmcnt(0)")
    e("    v_lshlrev_b32 v9, 16, v9")
    e("    v_lshlrev_b32 v10, 16, v10")
    e("    v_lshlrev_b32 v11, 16, v11")
    e("    v_add_f32 v32, v32, v9")
    e("    v_mul_f32 v33, v33, v10")
    e("    v_mov_b32 v34, v11                      ; beta")
    e("    v_mov_b32 v35, 0")
    e("    v_lshlrev_b32 v12, 4, v1")
    e("    ds_write_b128 v12, v[32:35]")
    e("    s_waitcnt lgkmcnt(0)")
    e("    s_barrier")
    e("    v_lshlrev_b32 v12, 7, v3")
    for k in range(8):
        e(f"    ds_read_b128 v[{32+4*k}:{35+4*k}], v12 offset:{k*16}")
    e("    s_waitcnt lgkmcnt(0)")
    e("    v_mov_b32 v14, 0x3d372713               ; 0.044715")
    e("    v_mov_b32 v15, 0xc0135761")
    e("    s_lshl_b32 s39, s23, 7")
    e("    v_add_u32 v13, s39, v2")
    e("    s_mul_i32 s33, s22, 1999")
    e("    s_lshl_b32 s33, s33, 10")
    e("    s_lshl_b32 s39, s21, 7")
    e("    s_add_u32 s33, s33, s39")
    e("    v_lshlrev_b32 v4, 10, v13")
    e("    v_lshl_add_u32 v4, v3, 4, v4")
    e("    v_add_u32 v4, s33, v4")
    for p in range(4):
        for d in range(4):
            src = 16 + 4*p + d
            for half in range(2):
                ch = 2*d + half
                x = 64 + half
                if half == 0:
                    e(f"    v_lshlrev_b32 v{x}, 16, v{src}")
                else:
                    e(f"    v_and_b32 v{x}, 0xffff0000, v{src}")
                e(f"    v_sub_f32 v{x}, v{x}, v{32+4*ch}")
                e(f"    v_fma_f32 v{x}, v{x}, v{33+4*ch}, v{34+4*ch}")
                e(f"    v_mul_f32 v{66+half}, v{x}, v{x}")
                e(f"    v_fma_f32 v{66+half}, v{66+half}, v14, 1.0")
                e(f"    v_mul_f32 v{66+half}, v{66+half}, v{x}")
                e(f"    v_mul_f32 v{66+half}, v{66+half}, v15")
                e(f"    v_exp_f32 v{66+half}, v{66+half}")
                e(f"    s_nop 0")
                e(f"    v_add_f32 v{66+half}, 1.0, v{66+half}")
                e(f"    v_rcp_f32 v{66+half}, v{66+half}")
                e(f"    s_nop 0")
                e(f"    v_mul_f32 v{x}, v{x}, v{66+half}")
            e(f"    v_cvt_pk_bf16_f32 v{src}, v64, v65")
        e(f"    v_cmp_gt_i32 vcc, {1999-32*p}, v13")
        e("    s_and_saveexec_b64 s[44:45], vcc")
        e(f"    buffer_store_dwordx4 v[{16+4*p}:{19+4*p}], v4, s[8:11], 0 offen offset:{0}" if p == 0 else
          f"    buffer_store_dwordx4 v[{16+4*p}:{19+4*p}], v5, s[8:11], 0 offen")
        e("    s_mov_b64 exec, s[44:45]")
        if p < 3:
            e(f"    v_add_u32 v5, {32768*(p+1)}, v4")
    e("L_k2_end:")
    e("    s_endpgm")

header()
gen_k1()
gen_k2()
e('.section .rodata,"a"')
kd(K1, 96, 48)
kd(K2, 72, 48)
path = sys.argv[1] if len(sys.argv) > 1 else f"cdna_kernels/{NAME}.s"
open(path, "w").write("\n".join(out) + "\n")
print("wrote", path, len(out), "lines")
```

```python
import sys, os
FLAGS=os.environ.get("GENFLAGS","").split(",")

NAME = "standalone__self_sup_conv_stem_hubert__speech"
K1 = "conv_gemm_kernel"
K2 = "norm_gelu_kernel"

NST = 24
RING = 6
STAGE = 24576
LDS1 = RING * STAGE
YWS_ROWS = 2048
STATS_OFF = 2 * YWS_ROWS * 1024

out = []
def e(s=""):
    out.append(s)

def header():
    e("; Kernarg layout for this problem (64 bytes, ptrs only, base s[0:1]):")
    e(f"; @launch kernel={K1} grid=(256,1,1) block=(256,1,1) lds={LDS1}")
    e(f"; @launch kernel={K2} grid=(256,1,1) block=(256,1,1) lds=1024")
    e('.amdgcn_target "amdgcn-amd-amdhsa--gfx950"')
    e(".text")

def kd(name, vgpr, sgpr):
    e(".p2align 6")
    e(f".amdhsa_kernel {name}")
    e(f"  .amdhsa_next_free_vgpr {vgpr}")
    e(f"  .amdhsa_next_free_sgpr {sgpr}")
    e(f"  .amdhsa_accum_offset {(vgpr+3)//4*4}")
    e("  .amdhsa_group_segment_fixed_size 0")
    e("  .amdhsa_kernarg_size 64")
    e("  .amdhsa_user_sgpr_count 2")
    e("  .amdhsa_user_sgpr_kernarg_segment_ptr 1")
    e("  .amdhsa_system_sgpr_workgroup_id_x 1")
    e(".end_amdhsa_kernel")

def srd(base, lo, hi, nbytes):
    e(f"    s_mov_b32 s{base}, s{lo}")
    e(f"    s_and_b32 s{base+1}, s{hi}, 0xffff")
    e(f"    s_mov_b32 s{base+2}, {nbytes}")
    e(f"    s_mov_b32 s{base+3}, 0x00020000")

def gen_k1():
    e(f".globl {K1}")
    e(".p2align 8")
    e(f".type {K1},@function")
    e(f"{K1}:")
    e("    s_cmp_ge_u32 s2, 256")
    e("    s_cbranch_scc1 L_k1_end")
    e("    s_load_dwordx4 s[24:27], s[0:1], 0      ; x, w")
    e("    s_load_dwordx2 s[28:29], s[0:1], 16     ; bias")
    e("    s_load_dwordx2 s[30:31], s[0:1], 56     ; ws")
    e("    s_and_b32 s20, s2, 31                   ; mt")
    e("    s_lshr_b32 s21, s2, 5                   ; nt")
    e("    s_lshr_b32 s22, s20, 4                  ; bb")
    e("    s_and_b32 s23, s20, 15                  ; tt")
    e("    v_and_b32 v1, 63, v0                    ; lane")
    e("    v_lshrrev_b32 v2, 6, v0                 ; wave")
    e("    s_nop 0")
    e("    v_readfirstlane_b32 s32, v2")
    e("    v_lshrrev_b32 v3, 3, v1                 ; lane>>3")
    e("    v_lshlrev_b32 v8, 5, v2                 ; 32w")
    e("    v_add_u32 v3, v3, v8                    ; 32w + lane>>3")
    e("    v_and_b32 v9, 7, v1                     ; p")
    e("    v_lshrrev_b32 v10, 4, v1                ; lane>>4")
    for i in range(4):
        e(f"    v_add_u32 v11, {4*i}, v10")
        e(f"    v_and_b32 v11, 7, v11")
        e(f"    v_xor_b32 v11, v11, v9                  ; chunk")
        e(f"    v_lshlrev_b32 v11, 4, v11")
        e(f"    v_add_u32 v12, {8*i}, v3")
        e(f"    v_lshl_add_u32 v{4+i}, v12, 11, v11")
    e("    v_lshrrev_b32 v3, 3, v1")
    e("    v_lshlrev_b32 v8, 4, v2                 ; 16w")
    e("    v_add_u32 v3, v3, v8                    ; krow (i=0)")
    e("    v_lshrrev_b32 v11, 1, v3")
    e("    v_and_b32 v11, 1, v11")
    e("    v_lshlrev_b32 v11, 2, v11")
    e("    v_xor_b32 v11, v11, v9")
    e("    v_lshlrev_b32 v11, 4, v11")
    e("    s_lshl_b32 s33, s21, 7                  ; nt*128")
    e("    v_add_u32 v11, s33, v11")
    e("    v_lshl_add_u32 v14, v3, 10, v11")
    e("    v_add_u32 v15, 0x2000, v14              ; +8 rows")
    e("    v_and_b32 v8, 31, v1                    ; r")
    e("    v_lshrrev_b32 v9, 5, v1                 ; h")
    e("    v_lshrrev_b32 v10, 1, v8")
    e("    v_and_b32 v10, 7, v10                   ; (r>>1)&7")
    e("    v_lshlrev_b32 v11, 5, v2")
    e("    v_add_u32 v11, v11, v8                  ; row")
    e("    v_lshlrev_b32 v11, 7, v11               ; row*128")
    for j in range(4):
        e(f"    v_add_u32 v12, {2*j}, v9")
        e(f"    v_xor_b32 v12, v12, v10")
        e(f"    v_lshl_add_u32 v{16+j}, v12, 4, v11")
    e("    v_lshrrev_b32 v8, 4, v1                 ; g")
    e("    v_lshrrev_b32 v9, 1, v8                 ; h")
    e("    v_and_b32 v8, 1, v8                     ; nb")
    e("    v_lshrrev_b32 v10, 2, v1")
    e("    v_and_b32 v10, 3, v10                   ; rr")
    e("    v_and_b32 v12, 3, v1                    ; cc")
    e("    v_lshl_add_u32 v9, v9, 3, v10           ; 8h+rr")
    e("    v_lshlrev_b32 v9, 7, v9                 ; *128")
    e("    v_add_u32 v9, 0x4000, v9                ; + B region")
    e("    v_and_b32 v13, 1, v12")
    e("    v_lshl_add_u32 v9, v13, 3, v9           ; + (cc&1)*8")
    e("    v_lshrrev_b32 v12, 1, v12               ; cc>>1")
    e("    v_lshl_add_u32 v12, v8, 1, v12")
    e("    v_lshrrev_b32 v13, 1, v10")
    e("    v_and_b32 v13, 1, v13")
    e("    v_lshlrev_b32 v13, 2, v13               ; 4*((rr>>1)&1)")
    e("    v_xor_b32 v12, v12, v13")
    e("    v_lshl_add_u32 v20, v12, 4, v9")
    e("    v_xor_b32 v12, 4, v12")
    e("    v_lshl_add_u32 v21, v12, 4, v9")
    e("    s_waitcnt lgkmcnt(0)")
    srd(4, 24, 25, 2*4000*512*2)
    srd(8, 26, 27, 3*512*512*2)
    srd(12, 30, 31, 0x10000000)
    srd(16, 28, 29, 1024)
    e("    s_mul_i32 s34, s22, 4000")
    e("    s_lshl_b32 s35, s23, 8")
    e("    s_add_u32 s34, s34, s35")
    e("    s_lshl_b32 s34, s34, 10")
    e("    s_mov_b32 s35, 0")
    e("    s_mov_b32 s43, s34")
    e("    s_lshr_b32 s42, s2, 3")
    e("    s_and_b32 s42, s42, 7")
    if "norot" not in FLAGS:
        e("    s_lshr_b32 s40, s2, 3")
        e("    s_cmp_ge_u32 s40, 24")
        e("    s_cselect_b32 s41, 24, 0")
        e("    s_sub_u32 s40, s40, s41")
        e("    s_lshl_b32 s35, s40, 16")
        e("    s_lshl_b32 s41, s40, 7")
        e("    s_add_u32 s34, s34, s41")
    e("    s_lshl_b32 s36, s32, 12")
    e("    s_lshl_b32 s37, s32, 11")
    e("    s_add_u32 s37, s37, 0x4000")
    for r in range(32):
        e(f"    v_mov_b32 v{64+r}, 0")

    dma_count = [0]
    def dma(slot):
        if "nodma" in FLAGS: return
        if "taporder" in FLAGS:
            n = dma_count[0]; dma_count[0] += 1
            tap = (0, 2, 1)[n % 3]
            e(f"    s_lshl_b32 s41, s42, 7")
            e(f"    s_add_u32 s34, s43, s41")
            if tap: e(f"    s_add_u32 s34, s34, {tap*1024}")
            e(f"    s_lshl_b32 s35, s42, 16")
            if tap: e(f"    s_add_u32 s35, s35, {tap*512*1024}")
            if n % 3 == 2:
                e("    s_add_u32 s42, s42, 1")
                e("    s_and_b32 s42, s42, 7")
        base = slot * STAGE
        for i in range(4):
            e(f"    s_add_u32 m0, s36, {base + i*1024}")
            e(f"    s_nop 0")
            if "vgprload" in FLAGS:
                e(f"    buffer_load_dwordx4 v[{96+4*((slot*6+i)%16)}:{99+4*((slot*6+i)%16)}], v{4+i}, s[4:7], s34 offen")
            else:
                e(f"    buffer_load_dwordx4 v{4+i}, s[4:7], s34 offen lds")
        for i in range(2):
            e(f"    s_add_u32 m0, s37, {base + i*1024}")
            e(f"    s_nop 0")
            if "vgprload" in FLAGS:
                e(f"    buffer_load_dwordx4 v[{96+4*((slot*6+4+i)%16)}:{99+4*((slot*6+4+i)%16)}], v{14+i}, s[8:11], s35 offen")
            else:
                e(f"    buffer_load_dwordx4 v{14+i}, s[8:11], s35 offen lds")
        e("    s_add_u32 s34, s34, 128")
        e("    s_add_u32 s35, s35, 0x10000")
        if "norot" not in FLAGS:
            e("    s_cmp_eq_u32 s35, 0x180000")
            e("    s_cselect_b32 s41, 3072, 0")
            e("    s_cselect_b32 s35, 0, s35")
            e("    s_sub_u32 s34, s34, s41")

    PRE = RING - 1
    for s in range(PRE):
        dma(s)

    def fa(st): return 24 + 12*st
    def fb(st): return 28 + 12*st

    def reads(slot, j, st):
        if "noread" in FLAGS: return
        base = slot * STAGE
        offA = base
        e(f"    ds_read_b128 v[{fa(st)}:{fa(st)+3}], vA{j}S{slot//2} offset:{offA - (slot//2)*2*STAGE}")
        for ct in range(2):
            for q in range(2):
                off = base - (slot//2)*2*STAGE + (16*j + 4*q)*128
                r0 = fb(st) + 4*ct + 2*q
                e(f"    ds_read_b64_tr_b16 v[{r0}:{r0+1}], vB{ct}S{slot//2} offset:{off}")

    amap = {0: 16, 1: 48, 2: 52}
    bmap = {0: 20, 1: 56, 2: 58}
    for g in (1, 2):
        for j in range(4):
            e(f"    v_add_u32 v{amap[g]+j}, {g*2*STAGE}, v{16+j}")
        for ct in range(2):
            e(f"    v_add_u32 v{bmap[g]+ct}, {g*2*STAGE}, v{20+ct}")

    body_start = len(out)
    outstanding_after = lambda issued, done: (issued - done) * 6
    issued = PRE
    e(f"    s_waitcnt vmcnt({(issued-1)*6})")
    e("    s_barrier")
    reads(0, 0, 0)
    step = 0
    for s in range(NST):
        slot = s % RING
        for j in range(4):
            st = step & 1
            if j == 2 and s + 1 < NST:
                e(f"    s_waitcnt vmcnt({(issued-(s+2))*6})")
                e("    s_barrier")
                if issued < NST:
                    dma(issued % RING)
                    issued += 1
            e("    s_waitcnt lgkmcnt(0)")
            if j < 3:
                reads(slot, j+1, st ^ 1)
            elif s + 1 < NST:
                reads((s+1) % RING, 0, st ^ 1)
            for ct in range(2):
                a = 64 + 16*ct
                if "nomfma" in FLAGS: continue
                e(f"    v_mfma_f32_32x32x16_bf16 v[{a}:{a+15}], v[{fa(st)}:{fa(st)+3}], v[{fb(st)+4*ct}:{fb(st)+4*ct+3}], v[{a}:{a+15}]")
            step += 1
    for idx in range(body_start, len(out)):
        l = out[idx]
        for g in range(3):
            for j in range(4):
                l = l.replace(f"vA{j}S{g}", f"v{amap[g]+j}")
            for ct in range(2):
                l = l.replace(f"vB{ct}S{g}", f"v{bmap[g]+ct}")
        out[idx] = l

    e("    s_waitcnt vmcnt(0) lgkmcnt(0)")
    e("    s_barrier")
    e("    v_and_b32 v8, 31, v1")
    e("    s_lshl_b32 s33, s21, 7")
    e("    v_lshl_add_u32 v9, v8, 1, s33")
    e("    buffer_load_ushort v24, v9, s[16:19], 0 offen")
    e("    buffer_load_ushort v25, v9, s[16:19], 0 offen offset:64")
    e("    s_lshl_b32 s33, s23, 7")
    e("    s_lshl_b32 s38, s32, 5")
    e("    s_add_u32 s33, s33, s38")
    e("    s_sub_u32 s33, 1999, s33")
    e("    v_lshrrev_b32 v10, 5, v1")
    e("    v_lshlrev_b32 v10, 2, v10")
    e("    v_sub_u32 v10, s33, v10")
    e("    s_nop 7")
    for ct in range(2):
        e(f"    v_mov_b32 v{26+2*ct}, 0")
        e(f"    v_mov_b32 v{27+2*ct}, 0")
    for r in range(16):
        i0 = 8*(r >> 2) + (r & 3)
        e(f"    v_cmp_lt_i32 vcc, {i0}, v10")
        e("    s_nop 1")
        for ct in range(2):
            a = 64 + 16*ct + r
            e(f"    v_cndmask_b32 v11, 0, v{a}, vcc")
            e(f"    v_add_f32 v{26+2*ct}, v{26+2*ct}, v11")
            e(f"    v_fmac_f32 v{27+2*ct}, v11, v11")
    e("    v_lshlrev_b32 v11, 3, v1")
    e("    s_lshl_b32 s38, s32, 10")
    e("    v_add_u32 v11, s38, v11")
    e("    ds_write_b64 v11, v[26:27]")
    e("    ds_write_b64 v11, v[28:29] offset:512")
    e("    s_waitcnt vmcnt(0)")
    e("    v_lshlrev_b32 v24, 16, v24")
    e("    v_lshlrev_b32 v25, 16, v25")
    e("    v_lshrrev_b32 v12, 5, v1                ; h")
    e("    v_lshlrev_b32 v12, 9, v12               ; 4h rows * 128")
    e("    v_lshl_add_u32 v12, v8, 1, v12          ; + c*2")
    e("    s_lshl_b32 s38, s32, 12")
    e("    s_add_u32 s38, s38, 8192")
    e("    v_add_u32 v12, s38, v12")
    for ct in range(2):
        for r in range(0, 16, 2):
            a = 64 + 16*ct + r
            e(f"    v_add_f32 v{a}, v{a}, v{24+ct}")
            e(f"    v_add_f32 v{a+1}, v{a+1}, v{24+ct}")
            e(f"    v_cvt_pk_bf16_f32 v{a}, v{a}, v{a+1}")
            i0 = 8*(r >> 2) + (r & 3)
            e(f"    ds_write_b16 v12, v{a} offset:{i0*128 + ct*64}")
            e(f"    ds_write_b16_d16_hi v12, v{a} offset:{(i0+1)*128 + ct*64}")
    e("    s_waitcnt lgkmcnt(0)")
    e("    s_barrier")
    e("    v_lshrrev_b32 v13, 3, v1")
    e("    v_and_b32 v14, 7, v1                    ; chunk")
    e("    v_lshlrev_b32 v15, 7, v13")
    e("    v_lshl_add_u32 v15, v14, 4, v15")
    e("    v_add_u32 v15, s38, v15")
    for i in range(4):
        e(f"    ds_read_b128 v[{32+4*i}:{35+4*i}], v15 offset:{i*1024}")
    e("    s_lshl_b32 s33, s22, 11")
    e("    s_lshl_b32 s39, s23, 7")
    e("    s_add_u32 s33, s33, s39")
    e("    s_lshl_b32 s39, s32, 5")
    e("    s_add_u32 s33, s33, s39")
    e("    s_lshl_b32 s33, s33, 10")
    e("    s_lshl_b32 s39, s21, 7")
    e("    s_add_u32 s33, s33, s39")
    e("    v_lshlrev_b32 v15, 10, v13")
    e("    v_lshl_add_u32 v15, v14, 4, v15")
    e("    v_add_u32 v15, s33, v15")
    for i in range(4):
        e(f"    s_waitcnt lgkmcnt({3-i})")
        e(f"    s_mov_b32 s39, {i*8192}")
        e(f"    buffer_store_dwordx4 v[{32+4*i}:{35+4*i}], v15, s[12:15], s39 offen")
    e("    s_cmp_lg_u32 s32, 0")
    e("    s_cbranch_scc1 L_k1_end")
    e("    v_lshrrev_b32 v11, 5, v1")
    e("    v_lshlrev_b32 v11, 9, v11")
    e("    v_lshl_add_u32 v11, v8, 3, v11")
    for w in range(4):
        for h in range(2):
            k = 2*w + h
            e(f"    ds_read_b64 v[{40+2*k}:{41+2*k}], v11 offset:{w*1024 + h*256}")
    e("    s_waitcnt lgkmcnt(0)")
    for k in range(1, 8):
        e(f"    v_add_f32 v40, v40, v{40+2*k}")
        e(f"    v_add_f32 v41, v41, v{41+2*k}")
    e("    s_lshl_b32 s33, s20, 9")
    e("    s_lshl_b32 s39, s21, 6")
    e("    s_add_u32 s33, s33, s39")
    e("    s_lshl_b32 s33, s33, 3")
    e(f"    s_add_u32 s33, s33, {STATS_OFF}")
    e("    v_lshl_add_u32 v11, v1, 3, s33")
    e("    buffer_store_dwordx2 v[40:41], v11, s[12:15], 0 offen")
    e("L_k1_end:")
    e("    s_endpgm")

def gen_k2():
    e(f".globl {K2}")
    e(".p2align 8")
    e(f".type {K2},@function")
    e(f"{K2}:")
    e("    s_cmp_ge_u32 s2, 256")
    e("    s_cbranch_scc1 L_k2_end")
    e("    s_load_dwordx4 s[24:27], s[0:1], 16")
    e("    s_load_dwordx4 s[28:31], s[0:1], 32")
    e("    s_load_dwordx2 s[32:33], s[0:1], 56     ; ws")
    e("    s_and_b32 s20, s2, 31                   ; mt")
    e("    s_lshr_b32 s21, s2, 5                   ; nt")
    e("    s_lshr_b32 s22, s20, 4                  ; bb")
    e("    s_and_b32 s23, s20, 15                  ; tt")
    e("    v_and_b32 v1, 63, v0                    ; lane")
    e("    v_lshrrev_b32 v2, 3, v0")
    e("    v_and_b32 v3, 7, v0                     ; chunk")
    e("    s_waitcnt lgkmcnt(0)")
    srd(4, 32, 33, 0x10000000)
    srd(8, 30, 31, 2*1999*512*2)
    srd(12, 24, 25, 1024)
    srd(16, 26, 27, 1024)
    srd(40, 28, 29, 1024)
    e("    s_lshl_b32 s33, s22, 11")
    e("    s_lshl_b32 s39, s23, 7")
    e("    s_add_u32 s33, s33, s39")
    e("    s_lshl_b32 s33, s33, 10")
    e("    s_lshl_b32 s39, s21, 7")
    e("    s_add_u32 s33, s33, s39")
    e("    v_lshlrev_b32 v4, 10, v2")
    e("    v_lshl_add_u32 v4, v3, 4, v4")
    e("    v_add_u32 v4, s33, v4")
    for p in range(4):
        e(f"    buffer_load_dwordx4 v[{16+4*p}:{19+4*p}], v4, s[4:7], 0 offen offset:{0}" if p == 0 else
          f"    buffer_load_dwordx4 v[{16+4*p}:{19+4*p}], v5, s[4:7], 0 offen")
        if p < 3:
            e(f"    v_add_u32 v5, {32768*(p+1)}, v4")
    e("    s_lshl_b32 s33, s22, 13                 ; bb*16*512")
    e("    s_lshl_b32 s39, s21, 6")
    e("    s_add_u32 s33, s33, s39")
    e("    s_lshl_b32 s33, s33, 3")
    e(f"    s_add_u32 s33, s33, {STATS_OFF}")
    e("    v_lshl_add_u32 v6, v1, 3, s33")
    for t in range(16):
        e(f"    buffer_load_dwordx2 v[{32+2*t}:{33+2*t}], v6, s[4:7], 0 offen offset:{t*4096}" if t*4096 < 4096 else
          f"    buffer_load_dwordx2 v[{32+2*t}:{33+2*t}], v7, s[4:7], 0 offen")
        if t < 15:
            e(f"    v_add_u32 v7, {(t+1)*4096}, v6")
    e("    s_lshl_b32 s39, s21, 7")
    e("    v_lshl_add_u32 v8, v1, 1, s39")
    e("    buffer_load_ushort v9, v8, s[12:15], 0 offen")
    e("    buffer_load_ushort v10, v8, s[16:19], 0 offen")
    e("    buffer_load_ushort v11, v8, s[40:43], 0 offen")
    e("    s_waitcnt vmcnt(3)")
    for t in range(1, 16):
        e(f"    v_add_f32 v32, v32, v{32+2*t}")
        e(f"    v_add_f32 v33, v33, v{33+2*t}")
    e("    v_mov_b32 v12, 0x3a032338               ; 1/1999")
    e("    v_mul_f32 v32, v32, v12                 ; mean(acc)")
    e("    v_mul_f32 v33, v33, v12                 ; E[acc^2]")
    e("    v_fma_f32 v33, -v32, v32, v33           ; var")
    e("    v_max_f32 v33, 0, v33")
    e("    v_add_f32 v33, 0x3727c5ac, v33          ; + 1e-5")
    e("    v_rsq_f32 v33, v33")
    e("    s_waitcnt vmcnt(0)")
    e("    v_lshlrev_b32 v9, 16, v9")
    e("    v_lshlrev_b32 v10, 16, v10")
    e("    v_lshlrev_b32 v11, 16, v11")
    e("    v_add_f32 v32, v32, v9")
    e("    v_mul_f32 v33, v33, v10")
    e("    v_mov_b32 v34, v11                      ; beta")
    e("    v_mov_b32 v35, 0")
    e("    v_lshlrev_b32 v12, 4, v1")
    e("    ds_write_b128 v12, v[32:35]")
    e("    s_waitcnt lgkmcnt(0)")
    e("    s_barrier")
    e("    v_lshlrev_b32 v12, 7, v3")
    for k in range(8):
        e(f"    ds_read_b128 v[{32+4*k}:{35+4*k}], v12 offset:{k*16}")
    e("    s_waitcnt lgkmcnt(0)")
    e("    v_mov_b32 v14, 0x3d372713               ; 0.044715")
    e("    v_mov_b32 v15, 0xc0135761")
    e("    s_lshl_b32 s39, s23, 7")
    e("    v_add_u32 v13, s39, v2")
    e("    s_mul_i32 s33, s22, 1999")
    e("    s_lshl_b32 s33, s33, 10")
    e("    s_lshl_b32 s39, s21, 7")
    e("    s_add_u32 s33, s33, s39")
    e("    v_lshlrev_b32 v4, 10, v13")
    e("    v_lshl_add_u32 v4, v3, 4, v4")
    e("    v_add_u32 v4, s33, v4")
    for p in range(4):
        for d in range(4):
            src = 16 + 4*p + d
            for half in range(2):
                ch = 2*d + half
                x = 64 + half
                if half == 0:
                    e(f"    v_lshlrev_b32 v{x}, 16, v{src}")
                else:
                    e(f"    v_and_b32 v{x}, 0xffff0000, v{src}")
                e(f"    v_sub_f32 v{x}, v{x}, v{32+4*ch}")
                e(f"    v_fma_f32 v{x}, v{x}, v{33+4*ch}, v{34+4*ch}")
                e(f"    v_mul_f32 v{66+half}, v{x}, v{x}")
                e(f"    v_fma_f32 v{66+half}, v{66+half}, v14, 1.0")
                e(f"    v_mul_f32 v{66+half}, v{66+half}, v{x}")
                e(f"    v_mul_f32 v{66+half}, v{66+half}, v15")
                e(f"    v_exp_f32 v{66+half}, v{66+half}")
                e(f"    s_nop 0")
                e(f"    v_add_f32 v{66+half}, 1.0, v{66+half}")
                e(f"    v_rcp_f32 v{66+half}, v{66+half}")
                e(f"    s_nop 0")
                e(f"    v_mul_f32 v{x}, v{x}, v{66+half}")
            e(f"    v_cvt_pk_bf16_f32 v{src}, v64, v65")
        e(f"    v_cmp_gt_i32 vcc, {1999-32*p}, v13")
        e("    s_and_saveexec_b64 s[44:45], vcc")
        e(f"    buffer_store_dwordx4 v[{16+4*p}:{19+4*p}], v4, s[8:11], 0 offen offset:{0}" if p == 0 else
          f"    buffer_store_dwordx4 v[{16+4*p}:{19+4*p}], v5, s[8:11], 0 offen")
        e("    s_mov_b64 exec, s[44:45]")
        if p < 3:
            e(f"    v_add_u32 v5, {32768*(p+1)}, v4")
    e("L_k2_end:")
    e("    s_endpgm")

header()
gen_k1()
gen_k2()
e('.section .rodata,"a"')
kd(K1, 160 if "vgprload" in FLAGS else 96, 48)
kd(K2, 72, 48)
path = sys.argv[1] if len(sys.argv) > 1 else f"cdna_kernels/{NAME}.s"
open(path, "w").write("\n".join(out) + "\n")
print("wrote", path, len(out), "lines")
```
